```python
import torch

def _softmax(x, axis=-1):
    return torch.softmax(x, dim=axis)
def _gelu(x):
    return torch.nn.functional.gelu(x, approximate="tanh")
def _silu(x):
    return torch.nn.functional.silu(x)
def _sigmoid(x):
    return torch.sigmoid(x)
def _layernorm(x, axis=-1, eps=1e-5):
    m = x.mean(dim=axis, keepdim=True)
    v = x.var(dim=axis, keepdim=True, unbiased=False)
    return (x - m) / torch.sqrt(v + eps)
def _scatter_add(tgt, idx, src, axis=0):
    return tgt.clone().index_add_(axis, idx, src)
def _segment_sum(src, seg, n):
    out = torch.zeros((n,) + src.shape[1:], dtype=src.dtype)
    return out.index_add_(0, seg, src)
def _pad(x, pw):
    flat = tuple(v for pair in reversed(pw) for v in pair)
    return torch.nn.functional.pad(x, flat)

kernel_name = 'standalone__weight_only_int_gptq__prompt'

def setup_inputs():

    _w = (lambda a: (lambda t: t.to(torch.bfloat16) if t.is_floating_point() else t)(torch.as_tensor(a)))
    B, S, D, F = 1, 2048, 576, 4608
    bits = max(2, min(4, 4))
    pf = 32 // bits
    G = -1 if -1 > 0 else D
    G = max(pf, (G // pf) * pf)
    D = max(G, (D // G) * G)
    ng = D // G
    qmax = 1 << bits
    qw = torch.randint(0, qmax, (D, F)).to(torch.int64)
    packed = torch.zeros((D // pf, F), dtype=torch.int64)
    for i in range(pf):
        packed |= (qw[i::pf] << (i * bits))
    packed = packed.to(torch.int32)
    return {
        "x": _w((lambda *s: torch.randn(*s, dtype=torch.bfloat16) * 0.05)(B, S, D)),
        "qw_packed": _w(packed),
        "scales": _w(torch.abs((lambda *s: torch.randn(*s, dtype=torch.bfloat16) * 0.05)(ng, F)).to(float) * 0.1 + 0.01),
        "zeros": _w(torch.randint(0, qmax, (ng, F)).to(float)),
        "bits": _w((lambda _x: torch.as_tensor(_x, dtype=torch.int32))(bits)),
    }

def reference(x, qw_packed, scales, zeros, bits):
    b = int(bits)
    pf = 32 // b
    mask = (1 << b) - 1
    P, F = qw_packed.shape
    D = P * pf
    ng = scales.shape[0]
    G = D // ng
    shifts = (lambda x, dt: x.to(dt))(torch.arange(pf) * b, qw_packed.dtype)
    qw = ((qw_packed[:, None, :] >> shifts[None, :, None]) & mask).reshape(D, F)
    s = (lambda x, n, axis: torch.repeat_interleave(x, n, dim=axis))(scales, G, axis=0)
    z = (lambda x, n, axis: torch.repeat_interleave(x, n, dim=axis))(zeros, G, axis=0)
    w = ((lambda x, dt: x.to(dt))(qw, x.dtype) - z) * s
    return torch.einsum("bsd,df->bsf", x, w)
```

```python
import sys
NAME = "standalone__weight_only_int_gptq__prompt"
HDR = open("cdna_kernels/%s.s.ref" % NAME).read().split("; Override launch geometry")[0]

o = []
def e(s): o.append("    " + s)

M, K, N = 2048, 576, 4608
NWAVES = (M // 64) * (N // 32)
NWG = NWAVES // 4

e("s_load_dwordx4 s[4:7], s[0:1], 0")
e("s_load_dwordx4 s[28:31], s[0:1], 16")
e("s_load_dwordx2 s[32:33], s[0:1], 40")
e("v_lshrrev_b32 v1, 6, v0")
e("s_nop 0")
e("v_readfirstlane_b32 s3, v1")
e("s_lshl_b32 s34, s2, 2")
e("s_nop 2")
e("s_add_u32 s34, s34, s3")
e("s_cmp_ge_u32 s34, %d" % NWAVES)
e("s_cbranch_scc1 L_done")
e("s_and_b32 s35, s34, 31")
e("s_lshr_b32 s36, s34, 5")
e("s_waitcnt lgkmcnt(0)")
def srd(d, b, nbytes):
    e("s_mov_b32 s%d, s%d" % (d, b))
    e("s_and_b32 s%d, s%d, 0xffff" % (d + 1, b + 1))
    e("s_mov_b32 s%d, %d" % (d + 2, nbytes))
    e("s_mov_b32 s%d, 0x00020000" % (d + 3))
srd(8, 4, M * K * 2)
srd(12, 6, (K // 8) * N * 4)
srd(16, 28, N * 2)
srd(20, 30, N * 2)
srd(24, 32, M * N * 2)
e("v_and_b32 v2, 31, v0")
e("v_bfe_u32 v3, v0, 5, 1")
e("v_mul_u32_u24 v4, 1152, v2")
e("v_lshl_add_u32 v4, v3, 4, v4")
e("v_add_u32 v5, 36864, v4")
e("s_mul_i32 s37, s35, %d" % (64 * 1152))
e("v_mul_u32_u24 v6, 18432, v3")
e("v_lshl_add_u32 v6, v2, 2, v6")
e("s_lshl_b32 s38, s36, 7")
e("s_mov_b32 s39, 0x000f000f")
e("v_mov_b32 v7, 0x43004300")
e("v_mov_b32 v8, 0x1001")
for r in range(4):
    e("v_mov_b32 v%d, 0x3f803f80" % (12 + r))
ACC0, ACC1, RS0, RS1 = 32, 48, 64, 80
for r in range(64):
    e("v_mov_b32 v%d, 0" % (32 + r))
for t in range(36):
    e("buffer_load_dwordx4 v[16:19], v4, s[8:11], s37 offen offset:%d" % (t * 32))
    e("buffer_load_dwordx4 v[20:23], v5, s[8:11], s37 offen offset:%d" % (t * 32))
    e("buffer_load_dword v9, v6, s[12:15], s38 offen")
    e("s_add_u32 s38, s38, 36864")
    e("s_waitcnt vmcnt(0)")
    for j in range(4):
        e("v_mul_u32_u24_sdwa v%d, v9, v8 dst_sel:DWORD dst_unused:UNUSED_PAD src0_sel:BYTE_%d src1_sel:DWORD" % (24 + j, j))
    for j in range(4):
        e("v_and_or_b32 v%d, v%d, s39, v7" % (24 + j, 24 + j))
    e("s_nop 1")
    e("v_mfma_f32_32x32x16_bf16 v[%d:%d], v[24:27], v[16:19], v[%d:%d]" % (ACC0, ACC0 + 15, ACC0, ACC0 + 15))
    e("v_mfma_f32_32x32x16_bf16 v[%d:%d], v[24:27], v[20:23], v[%d:%d]" % (ACC1, ACC1 + 15, ACC1, ACC1 + 15))
    e("v_mfma_f32_32x32x16_bf16 v[%d:%d], v[12:15], v[16:19], v[%d:%d]" % (RS0, RS0 + 15, RS0, RS0 + 15))
    e("v_mfma_f32_32x32x16_bf16 v[%d:%d], v[12:15], v[20:23], v[%d:%d]" % (RS1, RS1 + 15, RS1, RS1 + 15))
e("v_lshlrev_b32 v10, 3, v3")
e("s_lshl_b32 s40, s36, 6")
for g in range(4):
    e("buffer_load_dwordx2 v[%d:%d], v10, s[16:19], s40 offen offset:%d" % (96 + 2 * g, 97 + 2 * g, 16 * g))
    e("buffer_load_dwordx2 v[%d:%d], v10, s[20:23], s40 offen offset:%d" % (104 + 2 * g, 105 + 2 * g, 16 * g))
e("v_mul_u32_u24 v11, 9216, v2")
e("v_lshl_add_u32 v11, v3, 3, v11")
e("s_mul_i32 s41, s35, %d" % (64 * 9216))
e("s_add_u32 s41, s41, s40")
e("s_add_u32 s42, s41, %d" % (32 * 9216))
e("s_waitcnt vmcnt(0)")
e("s_nop 15")
for g in range(4):
    for d in range(2):
        e("v_lshlrev_b32 v%d, 16, v%d" % (112 + 4 * g + 2 * d, 96 + 2 * g + d))
        e("v_and_b32 v%d, 0xffff0000, v%d" % (112 + 4 * g + 2 * d + 1, 96 + 2 * g + d))
        e("v_lshlrev_b32 v%d, 16, v%d" % (128 + 4 * g + 2 * d, 104 + 2 * g + d))
        e("v_and_b32 v%d, 0xffff0000, v%d" % (128 + 4 * g + 2 * d + 1, 104 + 2 * g + d))
for r in range(16):
    e("v_add_f32 v%d, 0x43000000, v%d" % (128 + r, 128 + r))
for b, (acc, rs, so) in enumerate(((ACC0, RS0, 41), (ACC1, RS1, 42))):
    for r in range(16):
        e("v_fma_f32 v%d, -v%d, v%d, v%d" % (acc + r, 128 + r, rs, acc + r))
        e("v_mul_f32 v%d, v%d, v%d" % (acc + r, acc + r, 112 + r))
    for g in range(4):
        e("v_cvt_pk_bf16_f32 v%d, v%d, v%d" % (144 + 2 * g, acc + 4 * g, acc + 4 * g + 1))
        e("v_cvt_pk_bf16_f32 v%d, v%d, v%d" % (145 + 2 * g, acc + 4 * g + 2, acc + 4 * g + 3))
    for g in range(4):
        e("buffer_store_dwordx2 v[%d:%d], v11, s[24:27], s%d offen offset:%d" % (144 + 2 * g, 145 + 2 * g, so, 16 * g))
    e("s_waitcnt vmcnt(0)")
o.append("L_done:")
e("s_endpgm")

body = "\n".join(o)
src = HDR + """; @launch grid=(%d,1,1) block=(256,1,1) lds=0
.amdgcn_target "amdgcn-amd-amdhsa--gfx950"
.text
.globl %s_kernel
.p2align 8
.type %s_kernel,@function
%s_kernel:
%s
.section .rodata,"a"
.p2align 6
.amdhsa_kernel %s_kernel
  .amdhsa_next_free_vgpr 160
  .amdhsa_next_free_sgpr 48
  .amdhsa_accum_offset 160
  .amdhsa_group_segment_fixed_size 0
  .amdhsa_kernarg_size 64
  .amdhsa_user_sgpr_count 2
  .amdhsa_user_sgpr_kernarg_segment_ptr 1
  .amdhsa_system_sgpr_workgroup_id_x 1
.end_amdhsa_kernel
""" % (NWG, NAME, NAME, NAME, body, NAME)
open(sys.argv[1], "w").write(src)
```
